```python
import torch

def _softmax(x, axis=-1):
    return torch.softmax(x, dim=axis)
def _gelu(x):
    return torch.nn.functional.gelu(x, approximate="tanh")
def _silu(x):
    return torch.nn.functional.silu(x)
def _sigmoid(x):
    return torch.sigmoid(x)
def _layernorm(x, axis=-1, eps=1e-5):
    m = x.mean(dim=axis, keepdim=True)
    v = x.var(dim=axis, keepdim=True, unbiased=False)
    return (x - m) / torch.sqrt(v + eps)
def _scatter_add(tgt, idx, src, axis=0):
    return tgt.clone().index_add_(axis, idx, src)
def _segment_sum(src, seg, n):
    out = torch.zeros((n,) + src.shape[1:], dtype=src.dtype)
    return out.index_add_(0, seg, src)
def _pad(x, pw):
    flat = tuple(v for pair in reversed(pw) for v in pair)
    return torch.nn.functional.pad(x, flat)

kernel_name = 'standalone__weight_only_int_squeezellm__prompt'

def setup_inputs():

    _w = (lambda a: (lambda t: t.to(torch.bfloat16) if t.is_floating_point() else t)(torch.as_tensor(a)))
    B, S, D, F = 1, 2048, 576, 4608
    bits = 3 if (2 <= 3 <= 4) else 4
    L = 2 ** bits
    qw = torch.randint(0, L, (D, F)).to(torch.int64)
    lut = (lambda *s: torch.randn(*s, dtype=torch.bfloat16) * 0.05)(L, F)
    return {
        "x": _w((lambda *s: torch.randn(*s, dtype=torch.bfloat16) * 0.05)(B, S, D)),
        "qw": _w(qw),
        "lut": _w(lut),
    }

def reference(x, qw, lut):
    w = (lambda x, i, axis: torch.take_along_dim(x, i, dim=axis))(lut, qw, axis=0)
    w = (lambda x, dt: x.to(dt))(w, x.dtype)
    return torch.einsum('bsd,df->bsf', x, w)
```

```python
KN = "standalone__weight_only_int_squeezellm__prompt_kernel"

class Asm:
    def __init__(self):
        self.L = []
    def __call__(self, s):
        for line in s.split("\n"):
            self.L.append(line)
    def text(self):
        return "\n".join(self.L) + "\n"

def header(a, grid=256, block=256, lds=0):
    a(f"; @launch grid=({grid},1,1) block=({block},1,1) lds={lds}")
    a('.amdgcn_target "amdgcn-amd-amdhsa--gfx950"')
    a(".text")
    a(f".globl {KN}")
    a(".p2align 8")
    a(f".type {KN},@function")
    a(f"{KN}:")

def footer(a, vgpr=512, accum=256, sgpr=102):
    a("s_endpgm")
    a('.section .rodata,"a"')
    a(".p2align 6")
    a(f".amdhsa_kernel {KN}")
    a(f"  .amdhsa_next_free_vgpr {vgpr}")
    a(f"  .amdhsa_next_free_sgpr {sgpr}")
    a(f"  .amdhsa_accum_offset {accum}")
    a("  .amdhsa_group_segment_fixed_size 0")
    a("  .amdhsa_kernarg_size 48")
    a("  .amdhsa_user_sgpr_count 2")
    a("  .amdhsa_user_sgpr_kernarg_segment_ptr 1")
    a("  .amdhsa_system_sgpr_workgroup_id_x 1")
    a(".end_amdhsa_kernel")

class Stamps:
    def __init__(self, a, base=40, maxn=26):
        self.a, self.base, self.n, self.maxn = a, base, 0, maxn
        self.names = []
    def start(self):
        self.a("s_memrealtime s[94:95]")
        self.stamp("start")
    def stamp(self, name=""):
        assert self.n < self.maxn
        r = self.base + 2 * self.n
        self.a(f"s_memtime s[{r}:{r+1}]")
        self.n += 1
        self.names.append(name)
    def finish(self, ws_pair, tmpv=(1, 2, 3), tid="v0", waves=4):
        a = self.a
        v1, v2, v3 = tmpv
        a("s_memrealtime s[92:93]")
        a("s_waitcnt lgkmcnt(0)")
        a(f"v_lshrrev_b32 v{v1}, 6, {tid}")
        a("s_nop 0")
        a(f"v_readfirstlane_b32 s3, v{v1}")
        a(f"s_mul_i32 s6, s2, {waves}")
        a("s_add_u32 s6, s6, s3")
        a("s_lshl_b32 s6, s6, 8")
        a(f"s_mov_b32 s96, s{ws_pair}")
        a(f"s_mov_b32 s97, s{ws_pair+1}")
        a("s_mov_b32 s98, 0x10000000")
        a("s_mov_b32 s99, 0x00020000")
        a(f"v_mov_b32 v{v2}, 0")
        for s in range(self.n):
            a(f"v_writelane_b32 v{v2}, s{self.base + 2 * s}, {s}")
        a(f"v_writelane_b32 v{v2}, s94, 60")
        a(f"v_writelane_b32 v{v2}, s92, 61")
        a("s_getreg_b32 s7, hwreg(HW_REG_XCC_ID)")
        a(f"v_writelane_b32 v{v2}, s7, 62")
        a("s_getreg_b32 s7, hwreg(HW_REG_HW_ID)")
        a(f"v_writelane_b32 v{v2}, s7, 63")
        a(f"v_and_b32 v{v3}, 63, {tid}")
        a(f"v_lshlrev_b32 v{v3}, 2, v{v3}")
        a(f"v_add_u32 v{v3}, s6, v{v3}")
        a(f"buffer_store_dword v{v2}, v{v3}, s[96:99], 0 offen")
        a("s_waitcnt vmcnt(0)")
        a("; stamps: " + ",".join(self.names))
```

```python
import sys
from asmlib import *

opt = dict(rot=1, stamps=0, spol="sc1", spread=1, pfcode=0, xpol="", qpol="", prio=0)
for kv in sys.argv[1:]:
    k, v = kv.split("=")
    opt[k] = int(v) if v.lstrip("-").isdigit() else v.replace("_", " ")
if opt["spol"] == "plain":
    opt["spol"] = ""

XROW = 1152
QROW = 18432
OROW = 9216
BLK_X = 16 * XROW
BLK_O = 16 * OROW
RING1 = 4 * BLK_X
EXCH = RING1 + 3 * BLK_X
LDS_BYTES = EXCH + 32768

vQ = [0, 1, 2, 3]
vX = [4, 5]
vXs = 6
vA = [7, 8]
vAs = [9, 10]
vEw, vEr = 11, 12
vO1, vOs = 13, 14
vTID = 15
LUT = 16
TMP = 24
AF = 40
ACC1 = 64
CV = 96
ACCS = 24
FS = 32
W = 112

sX, sQ, sL, sO = 12, 16, 20, 24
sKX = 28
sKQ = 37
sSX = 46
sM1, sMs = 51, 52
sSEL0, sSEL1 = 53, 54
sH, sW, sFB, sNT, sX19, sP5 = 55, 56, 57, 58, 59, 60
sT0, sT1, sT2, sT3 = 61, 62, 63, 64
STAMP_BASE = 66

a = Asm()


def q(r, n=4):
    return f"v[{r}:{r + n - 1}]"


class Cnt:
    def __init__(self, name, maxn):
        self.name, self.maxn, self.ops = name, maxn, []

    def issue(self, tag, optional=False):
        self.ops.append((tag, optional))

    def need(self, tag):
        idx = [i for i, (t, _) in enumerate(self.ops) if t == tag]
        if not idx:
            return None
        n = sum(1 for (_, o) in self.ops[idx[-1] + 1:] if not o)
        self.ops = self.ops[idx[-1] + 1:]
        return min(n, self.maxn)

    def drain(self):
        self.ops = []


vm = Cnt("vmcnt", 63)
lg = Cnt("lgkmcnt", 15)


def wait(vmtag=None, lgtag=None, lg0=False):
    parts = []
    if vmtag is not None:
        n = vm.need(vmtag)
        if n is not None:
            parts.append(f"vmcnt({n})")
    if lg0:
        lg.drain()
        parts.append("lgkmcnt(0)")
    elif lgtag is not None:
        n = lg.need(lgtag)
        if n is not None:
            parts.append(f"lgkmcnt({n})")
    if parts:
        a("s_waitcnt " + " ".join(parts))


def mfma(d, wreg, af, c):
    cs = "0" if c is None else q(c)
    a(f"v_mfma_f32_16x16x32_bf16 {q(d)}, {q(wreg)}, {q(af)}, {cs}")


def dsread(dst, addr, off, tag):
    assert 0 <= off < 65536
    a(f"ds_read_b128 {q(dst)}, v{addr} offset:{off}")
    lg.issue(tag)


def dma(voff, soff, mbase, mconst, tag, optional=False):
    a(f"s_add_u32 m0, s{mbase}, {mconst}")
    a("s_nop 0")
    a(f"buffer_load_dwordx4 v{voff}, s[{sX}:{sX + 3}], s{soff} offen lds {opt['xpol']}")
    vm.issue(tag, optional)


def rawload(j, qi):
    a(f"buffer_load_dwordx4 {q(W + 16 * j + 4 * qi)}, v{vQ[qi]}, s[{sQ}:{sQ + 3}], s{sKQ + j} offen {opt['qpol']}")
    vm.issue(("L", j))


def loads_L(j):
    r = []
    for qi in range(4):
        r.append(lambda qi=qi: rawload(j, qi))
    for t in range(2):
        r.append(lambda t=t: dma(vX[t], sKX + j, sM1, RING1 + (j % 3) * BLK_X + t * 8192, ("L", j)))
    return r


def loads_pair(p):
    base = (p % 3) * 2 * BLK_X
    r = []

    def opt_piece():
        lab = f"L_skip8_{p}"
        a(f"s_cmp_lg_u32 s{sH}, 0")
        a(f"s_cbranch_scc1 {lab}")
        dma(vXs, sSX + 4, sMs, base + 8 * 2048, ("P", p), optional=True)
        a(f"{lab}:")
    r.append(opt_piece)
    for t in range(4):
        r.append(lambda t=t: dma(vXs, sSX + t, sMs, base + t * 2048, ("P", p)))
    r.append(lambda: a(f"v_add_u32 v{vXs}, {2 * BLK_X}, v{vXs}"))
    return r


def dequant(j):
    R = lambda qi, c: W + 16 * j + 4 * qi + c
    P = [TMP + c for c in range(4)]
    t = [TMP + 4 + c for c in range(4)]
    Sa0, Sb0 = TMP + 8, TMP + 9
    Lr = [TMP + 10, TMP + 12]
    Hr = [TMP + 11, TMP + 13]
    r = []
    for c in range(4):
        r.append(f"v_lshl_or_b32 v{P[c]}, v{R(1, c)}, 8, v{R(0, c)}")
        r.append(f"v_lshl_or_b32 v{t[c]}, v{R(3, c)}, 8, v{R(2, c)}")
    for c in (0, 2, 1, 3):
        r.append(f"v_lshl_or_b32 v{P[c]}, v{t[c]}, 16, v{P[c]}")
    r.append(f"v_cndmask_b32_dpp v{Sa0}, v{P[2]}, v{P[0]}, vcc row_ror:8 row_mask:0xf bank_mask:0xf")
    r.append(f"v_mov_b32_dpp v{P[2]}, v{P[0]} row_ror:8 row_mask:0xf bank_mask:0x3")
    r.append(f"v_cndmask_b32_dpp v{Sb0}, v{P[3]}, v{P[1]}, vcc row_ror:8 row_mask:0xf bank_mask:0xf")
    r.append(f"v_mov_b32_dpp v{P[3]}, v{P[1]} row_ror:8 row_mask:0xf bank_mask:0x3")
    S = [(Sa0, 0, 0), (P[2], 0, 2), (Sb0, 1, 0), (P[3], 1, 2)]
    for n, (s, col, dq) in enumerate(S):
        lo0, lo1, hi0, hi1 = (LUT + 4 * col + i for i in range(4))
        L_, H_ = Lr[n % 2], Hr[n % 2]
        d = W + 16 * j + 4 * col + dq
        r.append(f"v_perm_b32 v{L_}, v{lo1}, v{lo0}, v{s}")
        r.append(f"v_perm_b32 v{H_}, v{hi1}, v{hi0}, v{s}")
        r.append(f"v_perm_b32 v{d}, v{H_}, v{L_}, s{sSEL0}")
        r.append(f"v_perm_b32 v{d + 1}, v{H_}, v{L_}, s{sSEL1}")
    return r


def exch_write(j):
    for c in range(2):
        a(f"ds_write_b128 v{vEw}, {q(W + 16 * j + 4 * c)} offset:{(j % 2) * 16384 + c * 1024}")
        lg.issue(("EW", j))


cvsel = [0]


def store_block(da, db, voff, soff_const):
    cv = CV + 4 * cvsel[0]
    cvsel[0] ^= 1
    dst = [cv + 0, cv + 2, cv + 1, cv + 3]
    r = []
    for i in range(4):
        r.append(lambda i=i: a(f"v_cvt_pk_bf16_f32 v{dst[i]}, v{da + i}, v{db + i}"))
    r.append(lambda: a(f"s_mov_b32 s{sT0}, {soff_const}\ns_nop 0"))
    r.append(lambda: a(f"v_permlane32_swap_b32 v{cv}, v{cv + 1}"))
    r.append(lambda: a(f"v_permlane32_swap_b32 v{cv + 2}, v{cv + 3}"))

    def st():
        a(f"buffer_store_dwordx4 {q(cv)}, v{voff}, s[{sO}:{sO + 3}], s{sT0} offen {opt['spol']}")
        vm.issue(("S",))
    r.append(st)
    return r


header(a, grid=256, block=512, lds=LDS_BYTES)
st = Stamps(a, base=STAMP_BASE, maxn=13) if opt["stamps"] else None


def stamp(name):
    if st:
        st.stamp(name)


a("s_load_dwordx8 s[4:11], s[0:1], 0")
if st:
    st.start()
if opt["pfcode"]:
    a(f"s_getpc_b64 s[{sT2}:{sT2 + 1}]") if sT2 % 2 == 0 else a(f"s_getpc_b64 s[{sT1}:{sT1 + 1}]")
a("s_cmp_ge_u32 s2, 256")
a("s_cbranch_scc1 L_end")
a("s_and_b32 s12, s2, 7")
a("s_lshr_b32 s13, s2, 3")
a("s_and_b32 s14, s12, 1")
a("s_lshl_b32 s14, s14, 5")
a("s_add_u32 s14, s14, s13")
a("s_cmp_ge_u32 s14, 63")
a("s_cbranch_scc1 L_end")
a(f"v_mov_b32 v{vTID}, v0")
if opt["pfcode"]:
    pc = sT2 if sT2 % 2 == 0 else sT1
    a(f"v_lshlrev_b32 v16, 4, v{vTID}")
    for i in range(opt["pfcode"]):
        a(f"global_load_dwordx4 v[{96 + 4 * (i % 4)}:{99 + 4 * (i % 4)}], v16, s[{pc}:{pc + 1}]")
        vm.issue(("PF",))
        if i + 1 < opt["pfcode"]:
            a("v_add_u32 v16, 8192, v16")
a(f"v_lshrrev_b32 v17, 6, v{vTID}")
a("s_mul_i32 s15, s14, 9363")
a(f"v_readfirstlane_b32 s{sW}, v17")
a("s_lshr_b32 s15, s15, 16")
a("s_mul_i32 s16, s15, 7")
a("s_sub_u32 s16, s14, s16")
a("s_lshr_b32 s17, s12, 1")
a("s_mul_i32 s17, s17, 9")
a(f"s_add_u32 s{sNT}, s15, s17")
a("s_min_u32 s17, s16, 2")
a("s_mul_i32 s18, s16, 18")
a(f"s_add_u32 s{sFB}, s18, s17")
a("s_cmp_lt_u32 s16, 2")
a(f"s_cselect_b32 s{sX19}, 1, 0")
if opt["rot"] == 1:
    a(f"s_mov_b32 s{sT0}, s16")
elif opt["rot"] == 3:
    a(f"s_mul_i32 s{sT0}, s16, 21846")
    a(f"s_lshr_b32 s{sT0}, s{sT0}, 16")
    a(f"s_mul_i32 s{sT0}, s{sT0}, 3")
    a(f"s_sub_u32 s{sT0}, s16, s{sT0}")
    a(f"s_mul_i32 s{sT0}, s{sT0}, 3")
else:
    a(f"s_mov_b32 s{sT0}, 0")
for j in range(9):
    a(f"s_lshl_b32 s{sKX + j}, s{sT0}, 7")
    a(f"s_mul_i32 s{sKQ + j}, s{sT0}, {64 * QROW}")
    if j < 8:
        a(f"s_add_u32 s{sT0}, s{sT0}, 1")
        a(f"s_cmp_eq_u32 s{sT0}, 9")
        a(f"s_cselect_b32 s{sT0}, 0, s{sT0}")
a(f"s_lshr_b32 s{sH}, s{sW}, 2")
a(f"s_and_b32 s19, s{sW}, 3")
a(f"s_and_b32 s20, s{sW}, 1")
a(f"s_lshr_b32 s21, s{sW}, 1")
a("s_and_b32 s22, s21, 1")
a(f"s_cmp_eq_u32 s{sH}, 0")
for t in range(4):
    a(f"s_cselect_b32 s{sSX + t}, s{sKX + t}, s{sKX + 4 + t}")
a(f"s_mov_b32 s{sSX + 4}, s{sKX + 8}")
a("s_cmp_eq_u32 s22, 0")
a(f"s_cselect_b32 s{sP5}, s{sX19}, 0")
a("s_lshl_b32 s23, s20, 10")
a(f"s_lshl_b32 s{sM1}, s21, 11")
a(f"s_add_u32 s{sM1}, s{sM1}, s23")
a(f"s_mul_i32 s{sMs}, s22, {BLK_X}")
a(f"s_add_u32 s{sMs}, s{sMs}, s23")
a(f"s_lshl_b32 s24, s{sH}, 13")
a(f"s_add_u32 s{sMs}, s{sMs}, s24")
a(f"s_mov_b32 s{sSEL0}, 0x05010400")
a(f"s_mov_b32 s{sSEL1}, 0x07030602")
a("s_mov_b32 vcc_lo, 0x00ff00ff")
a("s_mov_b32 vcc_hi, 0x00ff00ff")
a(f"v_and_b32 v17, 63, v{vTID}")
a("v_lshrrev_b32 v18, 3, v17")
a("v_and_b32 v19, 7, v17")
a("v_lshrrev_b32 v20, 4, v17")
a("v_and_b32 v21, 15, v17")
a(f"s_lshl_b32 s25, s{sNT}, 9")
a("s_lshl_b32 s26, s19, 7")
a("s_add_u32 s25, s25, s26")
a(f"s_mul_i32 s26, s{sH}, {32 * QROW}")
a("s_add_u32 s25, s25, s26")
a(f"v_mul_u32_u24 v22, {4 * QROW}, v18")
a("v_lshl_add_u32 v22, v19, 4, v22")
a(f"v_add_u32 v{vQ[0]}, s25, v22")
for qi in range(1, 4):
    a(f"v_add_u32 v{vQ[qi]}, {QROW * qi}, v{vQ[0]}")
a("s_lshl_b32 s26, s20, 2")
a("v_add_u32 v22, s26, v20")
a("v_xor_b32 v22, v22, v19")
a(f"v_mul_u32_u24 v23, {XROW}, v18")
a("v_lshl_add_u32 v22, v22, 4, v23")
a(f"s_mul_i32 s26, s20, {8 * XROW}")
a(f"s_add_u32 s27, s{sFB}, s21")
a(f"s_mul_i32 s27, s27, {BLK_X}")
a("s_add_u32 s27, s27, s26")
a(f"v_add_u32 v{vX[0]}, s27, v22")
a(f"v_add_u32 v{vX[1]}, {4 * BLK_X}, v{vX[0]}")
a(f"s_add_u32 s27, s{sFB}, s22")
a("s_add_u32 s27, s27, 8")
a(f"s_mul_i32 s27, s27, {BLK_X}")
a("s_add_u32 s27, s27, s26")
a(f"v_add_u32 v{vXs}, s27, v22")
a("v_lshrrev_b32 v22, 3, v21")
a("v_lshlrev_b32 v22, 2, v22")
a("v_lshl_add_u32 v22, v19, 3, v22")
a(f"s_lshl_b32 s26, s{sNT}, 8")
a("s_lshl_b32 s27, s19, 6")
a("s_add_u32 s26, s26, s27")
a("v_add_u32 v23, s26, v22")

a("s_waitcnt lgkmcnt(0)")
a(f"s_mov_b32 s{sL}, s8\ns_mov_b32 s{sL + 1}, s9\ns_mov_b32 s{sL + 2}, 73728\ns_mov_b32 s{sL + 3}, 0x00020000")
a(f"s_mov_b32 s{sQ}, s6\ns_mov_b32 s{sQ + 1}, s7\ns_mov_b32 s{sQ + 2}, 10616832\ns_mov_b32 s{sQ + 3}, 0x00020000")
a(f"s_mov_b32 s{sX}, s4\ns_mov_b32 s{sX + 1}, s5\ns_mov_b32 s{sX + 2}, 2359296\ns_mov_b32 s{sX + 3}, 0x00020000")
stamp("karg")
L0 = loads_L(0)
for f in L0[:4]:
    f()
for e in range(8):
    a(f"s_mov_b32 s{sT1}, {e * OROW}")
    a(f"buffer_load_dword v{AF + e}, v23, s[{sL}:{sL + 3}], s{sT1} offen")
    vm.issue(("LUT",))
for f in L0[4:]:
    f()
for f in loads_L(1):
    f()
a(f"s_and_b32 s{sT1}, s{sW}, 3")
a(f"s_lshl_b32 s{sT1}, s{sT1}, 6")
a(f"s_lshl_b32 s{sT2}, s{sNT}, 8")
a(f"s_add_u32 s{sT1}, s{sT1}, s{sT2}")
a("v_and_b32 v22, 1, v20")
a("v_lshlrev_b32 v22, 5, v22")
a("v_lshrrev_b32 v23, 1, v20")
a("v_lshl_add_u32 v22, v23, 4, v22")
a(f"v_mul_u32_u24 v23, {OROW}, v21")
a("v_add_u32 v22, v22, v23")
a(f"v_add_u32 v22, s{sT1}, v22")
a(f"s_lshl_b32 s{sT1}, s{sH}, 2")
a(f"s_add_u32 s{sT1}, s{sT1}, s{sFB}")
a(f"s_mul_i32 s{sT1}, s{sT1}, {BLK_O}")
a(f"v_add_u32 v{vO1}, s{sT1}, v22")
a(f"s_add_u32 s{sT1}, s{sFB}, s{sH}")
a(f"s_add_u32 s{sT1}, s{sT1}, 8")
a(f"s_mul_i32 s{sT1}, s{sT1}, {BLK_O}")
a(f"v_add_u32 v{vOs}, s{sT1}, v22")
a(f"s_lshl_b32 s{sT1}, s{sH}, 2")
a(f"v_add_u32 v22, s{sT1}, v20")
a("v_lshrrev_b32 v23, 1, v21")
a("v_xor_b32 v22, v22, v23")
a("v_lshlrev_b32 v22, 4, v22")
a("v_lshl_add_u32 v22, v21, 7, v22")
a("v_xor_b32 v23, 64, v22")
a(f"s_lshl_b32 s{sT1}, s{sH}, 13")
a(f"s_add_u32 s{sT1}, s{sT1}, {RING1}")
a(f"v_add_u32 v{vA[0]}, s{sT1}, v22")
a(f"v_add_u32 v{vA[1]}, s{sT1}, v23")
a(f"s_mul_i32 s{sT1}, s{sH}, {BLK_X}")
a(f"v_add_u32 v{vAs[0]}, s{sT1}, v22")
a(f"v_add_u32 v{vAs[1]}, s{sT1}, v23")
a(f"s_lshl_b32 s{sT1}, s{sW}, 11")
a(f"s_add_u32 s{sT1}, s{sT1}, {EXCH}")
a("v_lshlrev_b32 v22, 4, v17")
a(f"v_add_u32 v{vEw}, s{sT1}, v22")
a(f"s_xor_b32 s{sT1}, s{sW}, 4")
a(f"s_lshl_b32 s{sT1}, s{sT1}, 11")
a(f"s_add_u32 s{sT1}, s{sT1}, {EXCH}")
a(f"v_add_u32 v{vEr}, s{sT1}, v22")
a(f"s_mov_b32 s{sO}, s10\ns_mov_b32 s{sO + 1}, s11\ns_mov_b32 s{sO + 2}, 18874368\ns_mov_b32 s{sO + 3}, 0x00020000")
if opt["prio"]:
    a(f"s_cmp_eq_u32 s{sH}, 0")
    a("s_cbranch_scc1 L_noprio")
    a("s_setprio 1")
    a("L_noprio:")
wait(vmtag=("LUT",))
a(f"s_mov_b32 s{sT1}, 0x07030602\ns_mov_b32 s{sT2}, 0x05040100\ns_mov_b32 s{sT3}, 0x07060302")
U = AF + 8
for pr in range(4):
    a(f"v_perm_b32 v{U + 2 * pr}, v{AF + 2 * pr + 1}, v{AF + 2 * pr}, s{sSEL0}")
    a(f"v_perm_b32 v{U + 2 * pr + 1}, v{AF + 2 * pr + 1}, v{AF + 2 * pr}, s{sT1}")
for col in range(2):
    for half in range(2):
        u0, u1 = U + 4 * half + col, U + 4 * half + 2 + col
        a(f"v_perm_b32 v{LUT + 4 * col + half}, v{u1}, v{u0}, s{sT2}")
        a(f"v_perm_b32 v{LUT + 4 * col + 2 + half}, v{u1}, v{u0}, s{sT3}")
wait(vmtag=("L", 0))
stamp("L0")
for s_ in dequant(0):
    a(s_)
exch_write(0)
wait(lg0=True)
a("s_barrier")
stamp("B0")

NA = 6
for j in range(9):
    ring = (j % 3) * BLK_X
    for c in range(2):
        dsread(W + 16 * j + 8 + 4 * c, vEr, (j % 2) * 16384 + c * 1024, ("WP", j))
    for b in range(4):
        dsread(AF + 4 * b, vA[0], ring + b * 2048, ("A", j, 0, b))
    for b in range(2):
        dsread(AF + 4 * (4 + b), vA[1], ring + b * 2048, ("A", j, 1, b))
    if j + 2 <= 8:
        pend = loads_L(j + 2)
    else:
        pend = loads_pair(j + 2 - 9)
    for b in range(4):
        wait(lgtag=("A", j, 0, b))
        for c in range(2):
            acc = ACC1 + 8 * b + 4 * c
            mfma(acc, W + 16 * j + 4 * c, AF + 4 * b, None if j == 0 else acc)
        if b in (1, 2):
            dsread(AF + 4 * (b - 1), vA[1], ring + (b + 1) * 2048, ("A", j, 1, b + 1))
        pend.pop(0)()
        if b >= 2:
            pend.pop(0)()
    assert not pend
    afp = [4, 5, 0, 1]
    if j < 8:
        wait(vmtag=("L", j + 1))
        dq = dequant(j + 1)
        for b in range(4):
            wait(lgtag=("A", j, 1, b))
            for c in range(2):
                acc = ACC1 + 8 * b + 4 * c
                mfma(acc, W + 16 * j + 8 + 4 * c, AF + 4 * afp[b], acc)
                for _ in range(4):
                    a(dq.pop(0))
        assert not dq
        exch_write(j + 1)
        wait(lg0=True)
        a("s_barrier")
        if j in (0, 3, 7):
            stamp(f"B{j + 1}")
    else:
        for b in range(2):
            wait(lgtag=("A", j, 1, b))
            for c in range(2):
                acc = ACC1 + 8 * b + 4 * c
                mfma(acc, W + 16 * j + 8 + 4 * c, AF + 4 * afp[b], acc)
        wait(vmtag=("P", 0), lg0=True)
        a("s_barrier")
        stamp("B9")
        a(f"s_mul_i32 s{sT1}, s{sH}, {BLK_X - 8192}")
        for s in range(2):
            dsread(AF + 4 * ((s + 2) % NA), vAs[s % 2], (s // 2) * 2048, ("B", 0, s))
        a(f"v_add_u32 v{vA[0]}, s{sT1}, v{vA[0]}")
        a(f"v_add_u32 v{vA[1]}, s{sT1}, v{vA[1]}")
        for s in range(2, 4):
            dsread(AF + 4 * ((s + 2) % NA), vAs[s % 2], (s // 2) * 2048, ("B", 0, s))
        for b in range(2, 4):
            for c in range(2):
                acc = ACC1 + 8 * b + 4 * c
                mfma(acc, W + 16 * j + 8 + 4 * c, AF + 4 * afp[b], acc)

NIT = 5


def rd(i, s):
    p = i % 3
    if p < 2:
        addr, off = vAs[s % 2], p * 2 * BLK_X
    else:
        addr, off = vA[s % 2], 0
    dsread(AF + 4 * ((s + 2) % NA), addr, off + (s // 2) * 2048, ("B", i, s))


def steady(i, last):
    side = []
    if i == 0:
        side += loads_pair(2)
    pre = []
    if i >= 1:
        pre += store_block(FS, FS + 4, vOs, (i - 1) * 2 * BLK_O)
    if opt["spread"]:
        if i < 4:
            pre += store_block(ACC1 + 8 * i, ACC1 + 8 * i + 4, vO1, i * BLK_O)
    elif i == 0:
        for b in range(4):
            pre += store_block(ACC1 + 8 * b, ACC1 + 8 * b + 4, vO1, b * BLK_O)
    side = side + pre
    nslots = 2 * 13
    for s in range(18):
        if s + 4 < 18:
            rd(i, s + 4)
        if s == 15 and not last:
            wait(vmtag=("P", i + 1), lg0=True)
            a("s_barrier")
            if i == NIT - 1:
                a(f"s_cmp_eq_u32 s{sH}, 0")
                a(f"s_cselect_b32 s{sT1}, s{sX19}, 0")
            for t in range(3):
                rd(i + 1, t)
            post = loads_pair(i + 3) if i + 3 < NIT else []
            if i + 3 == NIT:
                lab = "L_skip_p5"
                a(f"s_cmp_eq_u32 s{sP5}, 0")
                a(f"s_cbranch_scc1 {lab}")
                n0 = len(vm.ops)
                for f in loads_pair(NIT):
                    f()
                vm.ops[n0:] = [(t, True) for (t, _) in vm.ops[n0:]]
                a(f"{lab}:")
        if s == 16 and not last:
            rd(i + 1, 3)
        wait(lgtag=("B", i, s))
        for c in range(2):
            acc = ACCS + 4 * c
            d = FS + 4 * c if s == 17 else acc
            mfma(d, W + 16 * (s // 2) + 8 * (s % 2) + 4 * c, AF + 4 * ((s + 2) % NA), None if s == 0 else acc)
            if s >= 2 and s < 15 and side:
                k = -(-len(side) // nslots)
                for _ in range(k):
                    side.pop(0)()
            if s >= 2 and s < 15:
                nslots -= 1
            if s >= 15 and not last and post:
                post.pop(0)()
    assert not side
    if not last:
        assert not post


for i in range(NIT):
    steady(i, False)
    if i in (0, 2, 4):
        stamp(f"S{i}")
a(f"s_cmp_lg_u32 s{sT1}, 0")
a("s_cbranch_scc1 L_extra")
a("s_nop 7")
save_vm = list(vm.ops)
for f in store_block(FS, FS + 4, vOs, (NIT - 1) * 2 * BLK_O):
    f()
a("s_branch L_fin")
a("L_extra:")
vm.ops = save_vm
steady(NIT, True)
a("s_nop 7")
for f in store_block(FS, FS + 4, vOs, NIT * 2 * BLK_O):
    f()
a("L_fin:")
if st:
    stamp("issued")
    a("s_waitcnt vmcnt(0)")
    stamp("done")
    a("s_load_dwordx2 s[8:9], s[0:1], 40")
    st.finish(8, tmpv=(16, 17, 18), tid=f"v{vTID}", waves=8)
a("L_end:")
footer(a, vgpr=256, accum=256, sgpr=102)
print(a.text())
```

```python
import sys
from asmlib import *

opt = dict(diag="", diagwg=8, rot=1, stamps=0, spol="sc1", spread=1, pfcode=0, xpol="", qpol="", prio=0)
for kv in sys.argv[1:]:
    k, v = kv.split("=")
    opt[k] = int(v) if v.lstrip("-").isdigit() else v.replace("_", " ")
if opt["spol"] == "plain":
    opt["spol"] = ""

XROW = 1152
QROW = 18432
OROW = 9216
BLK_X = 16 * XROW
BLK_O = 16 * OROW
RING1 = 4 * BLK_X
EXCH = RING1 + 3 * BLK_X
LDS_BYTES = EXCH + 32768

vQ = [0, 1, 2, 3]
vX = [4, 5]
vXs = 6
vA = [7, 8]
vAs = [9, 10]
vEw, vEr = 11, 12
vO1, vOs = 13, 14
vTID = 15
LUT = 16
TMP = 24
AF = 40
ACC1 = 64
CV = 96
ACCS = 24
FS = 32
W = 112

sX, sQ, sL, sO = 12, 16, 20, 24
sKX = 28
sKQ = 37
sSX = 46
sM1, sMs = 51, 52
sSEL0, sSEL1 = 53, 54
sH, sW, sFB, sNT, sX19, sP5 = 55, 56, 57, 58, 59, 60
sT0, sT1, sT2, sT3 = 61, 62, 63, 64
STAMP_BASE = 66

a = Asm()


def q(r, n=4):
    return f"v[{r}:{r + n - 1}]"


class Cnt:
    def __init__(self, name, maxn):
        self.name, self.maxn, self.ops = name, maxn, []

    def issue(self, tag, optional=False):
        self.ops.append((tag, optional))

    def need(self, tag):
        idx = [i for i, (t, _) in enumerate(self.ops) if t == tag]
        if not idx:
            return None
        n = sum(1 for (_, o) in self.ops[idx[-1] + 1:] if not o)
        self.ops = self.ops[idx[-1] + 1:]
        return min(n, self.maxn)

    def drain(self):
        self.ops = []


vm = Cnt("vmcnt", 63)
lg = Cnt("lgkmcnt", 15)


def wait(vmtag=None, lgtag=None, lg0=False):
    parts = []
    if vmtag is not None:
        n = vm.need(vmtag)
        if n is not None:
            parts.append(f"vmcnt({n})")
    if lg0:
        lg.drain()
        parts.append("lgkmcnt(0)")
    elif lgtag is not None:
        n = lg.need(lgtag)
        if n is not None:
            parts.append(f"lgkmcnt({n})")
    if parts:
        a("s_waitcnt " + " ".join(parts))


def mfma(d, wreg, af, c):
    cs = "0" if c is None else q(c)
    a(f"v_mfma_f32_16x16x32_bf16 {q(d)}, {q(wreg)}, {q(af)}, {cs}")


def dsread(dst, addr, off, tag):
    assert 0 <= off < 65536
    a(f"ds_read_b128 {q(dst)}, v{addr} offset:{off}")
    lg.issue(tag)


def dma(voff, soff, mbase, mconst, tag, optional=False):
    a(f"s_add_u32 m0, s{mbase}, {mconst}")
    a("s_nop 0")
    a(f"buffer_load_dwordx4 v{voff}, s[{sX}:{sX + 3}], s{soff} offen {opt['xpol']} lds")
    vm.issue(tag, optional)


def rawload(j, qi):
    a(f"buffer_load_dwordx4 {q(W + 16 * j + 4 * qi)}, v{vQ[qi]}, s[{sQ}:{sQ + 3}], s{sKQ + j} offen {opt['qpol']}")
    vm.issue(("L", j))


def loads_L(j):
    r = []
    for qi in range(4):
        r.append(lambda qi=qi: rawload(j, qi))
    for t in range(2):
        r.append(lambda t=t: dma(vX[t], sKX + j, sM1, RING1 + (j % 3) * BLK_X + t * 8192, ("L", j)))
    return r


def loads_pair(p):
    base = (p % 3) * 2 * BLK_X
    r = []

    def opt_piece():
        lab = f"L_skip8_{p}"
        a(f"s_cmp_lg_u32 s{sH}, 0")
        a(f"s_cbranch_scc1 {lab}")
        dma(vXs, sSX + 4, sMs, base + 8 * 2048, ("P", p), optional=True)
        a(f"{lab}:")
    r.append(opt_piece)
    for t in range(4):
        r.append(lambda t=t: dma(vXs, sSX + t, sMs, base + t * 2048, ("P", p)))
    r.append(lambda: a(f"v_add_u32 v{vXs}, {2 * BLK_X}, v{vXs}"))
    return r


def dequant(j):
    R = lambda qi, c: W + 16 * j + 4 * qi + c
    P = [TMP + c for c in range(4)]
    t = [TMP + 4 + c for c in range(4)]
    Sa0, Sb0 = TMP + 8, TMP + 9
    Lr = [TMP + 10, TMP + 12]
    Hr = [TMP + 11, TMP + 13]
    r = []
    for c in range(4):
        r.append(f"v_lshl_or_b32 v{P[c]}, v{R(1, c)}, 8, v{R(0, c)}")
        r.append(f"v_lshl_or_b32 v{t[c]}, v{R(3, c)}, 8, v{R(2, c)}")
    for c in (0, 2, 1, 3):
        r.append(f"v_lshl_or_b32 v{P[c]}, v{t[c]}, 16, v{P[c]}")
    r.append(f"v_cndmask_b32_dpp v{Sa0}, v{P[2]}, v{P[0]}, vcc row_ror:8 row_mask:0xf bank_mask:0xf")
    r.append(f"v_mov_b32_dpp v{P[2]}, v{P[0]} row_ror:8 row_mask:0xf bank_mask:0x3")
    r.append(f"v_cndmask_b32_dpp v{Sb0}, v{P[3]}, v{P[1]}, vcc row_ror:8 row_mask:0xf bank_mask:0xf")
    r.append(f"v_mov_b32_dpp v{P[3]}, v{P[1]} row_ror:8 row_mask:0xf bank_mask:0x3")
    S = [(Sa0, 0, 0), (P[2], 0, 2), (Sb0, 1, 0), (P[3], 1, 2)]
    for n, (s, col, dq) in enumerate(S):
        lo0, lo1, hi0, hi1 = (LUT + 4 * col + i for i in range(4))
        L_, H_ = Lr[n % 2], Hr[n % 2]
        d = W + 16 * j + 4 * col + dq
        r.append(f"v_perm_b32 v{L_}, v{lo1}, v{lo0}, v{s}")
        r.append(f"v_perm_b32 v{H_}, v{hi1}, v{hi0}, v{s}")
        r.append(f"v_perm_b32 v{d}, v{H_}, v{L_}, s{sSEL0}")
        r.append(f"v_perm_b32 v{d + 1}, v{H_}, v{L_}, s{sSEL1}")
    return r


def exch_write(j):
    for c in range(2):
        a(f"ds_write_b128 v{vEw}, {q(W + 16 * j + 4 * c)} offset:{(j % 2) * 16384 + c * 1024}")
        lg.issue(("EW", j))


cvsel = [0]


def store_block(da, db, voff, soff_const):
    cv = CV + 4 * cvsel[0]
    cvsel[0] ^= 1
    dst = [cv + 0, cv + 2, cv + 1, cv + 3]
    r = []
    for i in range(4):
        r.append(lambda i=i: a(f"v_cvt_pk_bf16_f32 v{dst[i]}, v{da + i}, v{db + i}"))
    r.append(lambda: a(f"s_mov_b32 s{sT0}, {soff_const}\ns_nop 0"))
    r.append(lambda: a(f"v_permlane32_swap_b32 v{cv}, v{cv + 1}"))
    r.append(lambda: a(f"v_permlane32_swap_b32 v{cv + 2}, v{cv + 3}"))

    def st():
        a(f"buffer_store_dwordx4 {q(cv)}, v{voff}, s[{sO}:{sO + 3}], s{sT0} offen {opt['spol']}")
        vm.issue(("S",))
    r.append(st)
    return r


header(a, grid=256, block=512, lds=LDS_BYTES)
st = Stamps(a, base=STAMP_BASE, maxn=13) if opt["stamps"] else None


def stamp(name):
    if st:
        st.stamp(name)
    if opt["diag"] == name:
        a("s_memrealtime s[90:91]")


a("s_load_dwordx8 s[4:11], s[0:1], 0")
if st:
    st.start()
if opt["diag"]:
    a("s_memrealtime s[94:95]")
if opt["pfcode"]:
    a(f"s_getpc_b64 s[{sT2}:{sT2 + 1}]") if sT2 % 2 == 0 else a(f"s_getpc_b64 s[{sT1}:{sT1 + 1}]")
a("s_cmp_ge_u32 s2, 256")
a("s_cbranch_scc1 L_end")
a("s_and_b32 s12, s2, 7")
a("s_lshr_b32 s13, s2, 3")
a("s_and_b32 s14, s12, 1")
a("s_lshl_b32 s14, s14, 5")
a("s_add_u32 s14, s14, s13")
a("s_cmp_ge_u32 s14, 63")
a("s_cbranch_scc1 L_end")
a(f"v_mov_b32 v{vTID}, v0")
if opt["pfcode"]:
    pc = sT2 if sT2 % 2 == 0 else sT1
    a(f"v_lshlrev_b32 v16, 4, v{vTID}")
    for i in range(opt["pfcode"]):
        a(f"global_load_dwordx4 v[{96 + 4 * (i % 4)}:{99 + 4 * (i % 4)}], v16, s[{pc}:{pc + 1}]")
        vm.issue(("PF",))
        if i + 1 < opt["pfcode"]:
            a("v_add_u32 v16, 8192, v16")
a(f"v_lshrrev_b32 v17, 6, v{vTID}")
a("s_mul_i32 s15, s14, 9363")
a(f"v_readfirstlane_b32 s{sW}, v17")
a("s_lshr_b32 s15, s15, 16")
a("s_mul_i32 s16, s15, 7")
a("s_sub_u32 s16, s14, s16")
a("s_lshr_b32 s17, s12, 1")
a("s_mul_i32 s17, s17, 9")
a(f"s_add_u32 s{sNT}, s15, s17")
a("s_min_u32 s17, s16, 2")
a("s_mul_i32 s18, s16, 18")
a(f"s_add_u32 s{sFB}, s18, s17")
a("s_cmp_lt_u32 s16, 2")
a(f"s_cselect_b32 s{sX19}, 1, 0")
if opt["rot"] == 1:
    a(f"s_mov_b32 s{sT0}, s16")
elif opt["rot"] == 3:
    a(f"s_mul_i32 s{sT0}, s16, 21846")
    a(f"s_lshr_b32 s{sT0}, s{sT0}, 16")
    a(f"s_mul_i32 s{sT0}, s{sT0}, 3")
    a(f"s_sub_u32 s{sT0}, s16, s{sT0}")
    a(f"s_mul_i32 s{sT0}, s{sT0}, 3")
else:
    a(f"s_mov_b32 s{sT0}, 0")
for j in range(9):
    a(f"s_lshl_b32 s{sKX + j}, s{sT0}, 7")
    a(f"s_mul_i32 s{sKQ + j}, s{sT0}, {64 * QROW}")
    if j < 8:
        a(f"s_add_u32 s{sT0}, s{sT0}, 1")
        a(f"s_cmp_eq_u32 s{sT0}, 9")
        a(f"s_cselect_b32 s{sT0}, 0, s{sT0}")
a(f"s_lshr_b32 s{sH}, s{sW}, 2")
a(f"s_and_b32 s19, s{sW}, 3")
a(f"s_and_b32 s20, s{sW}, 1")
a(f"s_lshr_b32 s21, s{sW}, 1")
a("s_and_b32 s22, s21, 1")
a(f"s_cmp_eq_u32 s{sH}, 0")
for t in range(4):
    a(f"s_cselect_b32 s{sSX + t}, s{sKX + t}, s{sKX + 4 + t}")
a(f"s_mov_b32 s{sSX + 4}, s{sKX + 8}")
a("s_cmp_eq_u32 s22, 0")
a(f"s_cselect_b32 s{sP5}, s{sX19}, 0")
a("s_lshl_b32 s23, s20, 10")
a(f"s_lshl_b32 s{sM1}, s21, 11")
a(f"s_add_u32 s{sM1}, s{sM1}, s23")
a(f"s_mul_i32 s{sMs}, s22, {BLK_X}")
a(f"s_add_u32 s{sMs}, s{sMs}, s23")
a(f"s_lshl_b32 s24, s{sH}, 13")
a(f"s_add_u32 s{sMs}, s{sMs}, s24")
a(f"s_mov_b32 s{sSEL0}, 0x05010400")
a(f"s_mov_b32 s{sSEL1}, 0x07030602")
a("s_mov_b32 vcc_lo, 0x00ff00ff")
a("s_mov_b32 vcc_hi, 0x00ff00ff")
a(f"v_and_b32 v17, 63, v{vTID}")
a("v_lshrrev_b32 v18, 3, v17")
a("v_and_b32 v19, 7, v17")
a("v_lshrrev_b32 v20, 4, v17")
a("v_and_b32 v21, 15, v17")
a(f"s_lshl_b32 s25, s{sNT}, 9")
a("s_lshl_b32 s26, s19, 7")
a("s_add_u32 s25, s25, s26")
a(f"s_mul_i32 s26, s{sH}, {32 * QROW}")
a("s_add_u32 s25, s25, s26")
a(f"v_mul_u32_u24 v22, {4 * QROW}, v18")
a("v_lshl_add_u32 v22, v19, 4, v22")
a(f"v_add_u32 v{vQ[0]}, s25, v22")
for qi in range(1, 4):
    a(f"v_add_u32 v{vQ[qi]}, {QROW * qi}, v{vQ[0]}")
a("s_lshl_b32 s26, s20, 2")
a("v_add_u32 v22, s26, v20")
a("v_xor_b32 v22, v22, v19")
a(f"v_mul_u32_u24 v23, {XROW}, v18")
a("v_lshl_add_u32 v22, v22, 4, v23")
a(f"s_mul_i32 s26, s20, {8 * XROW}")
a(f"s_add_u32 s27, s{sFB}, s21")
a(f"s_mul_i32 s27, s27, {BLK_X}")
a("s_add_u32 s27, s27, s26")
a(f"v_add_u32 v{vX[0]}, s27, v22")
a(f"v_add_u32 v{vX[1]}, {4 * BLK_X}, v{vX[0]}")
a(f"s_add_u32 s27, s{sFB}, s22")
a("s_add_u32 s27, s27, 8")
a(f"s_mul_i32 s27, s27, {BLK_X}")
a("s_add_u32 s27, s27, s26")
a(f"v_add_u32 v{vXs}, s27, v22")
a("v_lshrrev_b32 v22, 3, v21")
a("v_lshlrev_b32 v22, 2, v22")
a("v_lshl_add_u32 v22, v19, 3, v22")
a(f"s_lshl_b32 s26, s{sNT}, 8")
a("s_lshl_b32 s27, s19, 6")
a("s_add_u32 s26, s26, s27")
a("v_add_u32 v23, s26, v22")

a("s_waitcnt lgkmcnt(0)")
a(f"s_mov_b32 s{sL}, s8\ns_mov_b32 s{sL + 1}, s9\ns_mov_b32 s{sL + 2}, 73728\ns_mov_b32 s{sL + 3}, 0x00020000")
a(f"s_mov_b32 s{sQ}, s6\ns_mov_b32 s{sQ + 1}, s7\ns_mov_b32 s{sQ + 2}, 10616832\ns_mov_b32 s{sQ + 3}, 0x00020000")
a(f"s_mov_b32 s{sX}, s4\ns_mov_b32 s{sX + 1}, s5\ns_mov_b32 s{sX + 2}, 2359296\ns_mov_b32 s{sX + 3}, 0x00020000")
stamp("karg")
L0 = loads_L(0)
for f in L0[:4]:
    f()
for e in range(8):
    a(f"s_mov_b32 s{sT1}, {e * OROW}")
    a(f"buffer_load_dword v{AF + e}, v23, s[{sL}:{sL + 3}], s{sT1} offen")
    vm.issue(("LUT",))
for f in L0[4:]:
    f()
for f in loads_L(1):
    f()
a(f"s_and_b32 s{sT1}, s{sW}, 3")
a(f"s_lshl_b32 s{sT1}, s{sT1}, 6")
a(f"s_lshl_b32 s{sT2}, s{sNT}, 8")
a(f"s_add_u32 s{sT1}, s{sT1}, s{sT2}")
a("v_and_b32 v22, 1, v20")
a("v_lshlrev_b32 v22, 5, v22")
a("v_lshrrev_b32 v23, 1, v20")
a("v_lshl_add_u32 v22, v23, 4, v22")
a(f"v_mul_u32_u24 v23, {OROW}, v21")
a("v_add_u32 v22, v22, v23")
a(f"v_add_u32 v22, s{sT1}, v22")
a(f"s_lshl_b32 s{sT1}, s{sH}, 2")
a(f"s_add_u32 s{sT1}, s{sT1}, s{sFB}")
a(f"s_mul_i32 s{sT1}, s{sT1}, {BLK_O}")
a(f"v_add_u32 v{vO1}, s{sT1}, v22")
a(f"s_add_u32 s{sT1}, s{sFB}, s{sH}")
a(f"s_add_u32 s{sT1}, s{sT1}, 8")
a(f"s_mul_i32 s{sT1}, s{sT1}, {BLK_O}")
a(f"v_add_u32 v{vOs}, s{sT1}, v22")
a(f"s_lshl_b32 s{sT1}, s{sH}, 2")
a(f"v_add_u32 v22, s{sT1}, v20")
a("v_lshrrev_b32 v23, 1, v21")
a("v_xor_b32 v22, v22, v23")
a("v_lshlrev_b32 v22, 4, v22")
a("v_lshl_add_u32 v22, v21, 7, v22")
a("v_xor_b32 v23, 64, v22")
a(f"s_lshl_b32 s{sT1}, s{sH}, 13")
a(f"s_add_u32 s{sT1}, s{sT1}, {RING1}")
a(f"v_add_u32 v{vA[0]}, s{sT1}, v22")
a(f"v_add_u32 v{vA[1]}, s{sT1}, v23")
a(f"s_mul_i32 s{sT1}, s{sH}, {BLK_X}")
a(f"v_add_u32 v{vAs[0]}, s{sT1}, v22")
a(f"v_add_u32 v{vAs[1]}, s{sT1}, v23")
a(f"s_lshl_b32 s{sT1}, s{sW}, 11")
a(f"s_add_u32 s{sT1}, s{sT1}, {EXCH}")
a("v_lshlrev_b32 v22, 4, v17")
a(f"v_add_u32 v{vEw}, s{sT1}, v22")
a(f"s_xor_b32 s{sT1}, s{sW}, 4")
a(f"s_lshl_b32 s{sT1}, s{sT1}, 11")
a(f"s_add_u32 s{sT1}, s{sT1}, {EXCH}")
a(f"v_add_u32 v{vEr}, s{sT1}, v22")
a(f"s_mov_b32 s{sO}, s10\ns_mov_b32 s{sO + 1}, s11\ns_mov_b32 s{sO + 2}, 18874368\ns_mov_b32 s{sO + 3}, 0x00020000")
if opt["prio"]:
    a(f"s_cmp_eq_u32 s{sH}, 0")
    a("s_cbranch_scc1 L_noprio")
    a("s_setprio 1")
    a("L_noprio:")
wait(vmtag=("LUT",))
a(f"s_mov_b32 s{sT1}, 0x07030602\ns_mov_b32 s{sT2}, 0x05040100\ns_mov_b32 s{sT3}, 0x07060302")
U = AF + 8
for pr in range(4):
    a(f"v_perm_b32 v{U + 2 * pr}, v{AF + 2 * pr + 1}, v{AF + 2 * pr}, s{sSEL0}")
    a(f"v_perm_b32 v{U + 2 * pr + 1}, v{AF + 2 * pr + 1}, v{AF + 2 * pr}, s{sT1}")
for col in range(2):
    for half in range(2):
        u0, u1 = U + 4 * half + col, U + 4 * half + 2 + col
        a(f"v_perm_b32 v{LUT + 4 * col + half}, v{u1}, v{u0}, s{sT2}")
        a(f"v_perm_b32 v{LUT + 4 * col + 2 + half}, v{u1}, v{u0}, s{sT3}")
wait(vmtag=("L", 0))
stamp("L0")
for s_ in dequant(0):
    a(s_)
exch_write(0)
wait(lg0=True)
a("s_barrier")
stamp("B0")

NA = 6
for j in range(9):
    ring = (j % 3) * BLK_X
    for c in range(2):
        dsread(W + 16 * j + 8 + 4 * c, vEr, (j % 2) * 16384 + c * 1024, ("WP", j))
    for b in range(4):
        dsread(AF + 4 * b, vA[0], ring + b * 2048, ("A", j, 0, b))
    for b in range(2):
        dsread(AF + 4 * (4 + b), vA[1], ring + b * 2048, ("A", j, 1, b))
    if j + 2 <= 8:
        pend = loads_L(j + 2)
    else:
        pend = loads_pair(j + 2 - 9)
    for b in range(4):
        wait(lgtag=("A", j, 0, b))
        for c in range(2):
            acc = ACC1 + 8 * b + 4 * c
            mfma(acc, W + 16 * j + 4 * c, AF + 4 * b, None if j == 0 else acc)
        if b in (1, 2):
            dsread(AF + 4 * (b - 1), vA[1], ring + (b + 1) * 2048, ("A", j, 1, b + 1))
        pend.pop(0)()
        if b >= 2:
            pend.pop(0)()
    assert not pend
    afp = [4, 5, 0, 1]
    if j < 8:
        wait(vmtag=("L", j + 1))
        dq = dequant(j + 1)
        for b in range(4):
            wait(lgtag=("A", j, 1, b))
            for c in range(2):
                acc = ACC1 + 8 * b + 4 * c
                mfma(acc, W + 16 * j + 8 + 4 * c, AF + 4 * afp[b], acc)
                for _ in range(4):
                    a(dq.pop(0))
        assert not dq
        exch_write(j + 1)
        wait(lg0=True)
        a("s_barrier")
        if j in (0, 3, 7):
            stamp(f"B{j + 1}")
    else:
        for b in range(2):
            wait(lgtag=("A", j, 1, b))
            for c in range(2):
                acc = ACC1 + 8 * b + 4 * c
                mfma(acc, W + 16 * j + 8 + 4 * c, AF + 4 * afp[b], acc)
        wait(vmtag=("P", 0), lg0=True)
        a("s_barrier")
        stamp("B9")
        a(f"s_mul_i32 s{sT1}, s{sH}, {BLK_X - 8192}")
        for s in range(2):
            dsread(AF + 4 * ((s + 2) % NA), vAs[s % 2], (s // 2) * 2048, ("B", 0, s))
        a(f"v_add_u32 v{vA[0]}, s{sT1}, v{vA[0]}")
        a(f"v_add_u32 v{vA[1]}, s{sT1}, v{vA[1]}")
        for s in range(2, 4):
            dsread(AF + 4 * ((s + 2) % NA), vAs[s % 2], (s // 2) * 2048, ("B", 0, s))
        for b in range(2, 4):
            for c in range(2):
                acc = ACC1 + 8 * b + 4 * c
                mfma(acc, W + 16 * j + 8 + 4 * c, AF + 4 * afp[b], acc)

NIT = 5


def rd(i, s):
    p = i % 3
    if p < 2:
        addr, off = vAs[s % 2], p * 2 * BLK_X
    else:
        addr, off = vA[s % 2], 0
    dsread(AF + 4 * ((s + 2) % NA), addr, off + (s // 2) * 2048, ("B", i, s))


def steady(i, last):
    side = []
    if i == 0:
        side += loads_pair(2)
    pre = []
    if i >= 1:
        pre += store_block(FS, FS + 4, vOs, (i - 1) * 2 * BLK_O)
    if opt["spread"]:
        if i < 4:
            pre += store_block(ACC1 + 8 * i, ACC1 + 8 * i + 4, vO1, i * BLK_O)
    elif i == 0:
        for b in range(4):
            pre += store_block(ACC1 + 8 * b, ACC1 + 8 * b + 4, vO1, b * BLK_O)
    side = side + pre
    nslots = 2 * 13
    for s in range(18):
        if s + 4 < 18:
            rd(i, s + 4)
        if s == 15 and not last:
            wait(vmtag=("P", i + 1), lg0=True)
            a("s_barrier")
            if i == NIT - 1:
                a(f"s_cmp_eq_u32 s{sH}, 0")
                a(f"s_cselect_b32 s{sT1}, s{sX19}, 0")
            for t in range(3):
                rd(i + 1, t)
            post = loads_pair(i + 3) if i + 3 < NIT else []
            if i + 3 == NIT:
                lab = "L_skip_p5"
                a(f"s_cmp_eq_u32 s{sP5}, 0")
                a(f"s_cbranch_scc1 {lab}")
                n0 = len(vm.ops)
                for f in loads_pair(NIT):
                    f()
                vm.ops[n0:] = [(t, True) for (t, _) in vm.ops[n0:]]
                a(f"{lab}:")
        if s == 16 and not last:
            rd(i + 1, 3)
        wait(lgtag=("B", i, s))
        for c in range(2):
            acc = ACCS + 4 * c
            d = FS + 4 * c if s == 17 else acc
            mfma(d, W + 16 * (s // 2) + 8 * (s % 2) + 4 * c, AF + 4 * ((s + 2) % NA), None if s == 0 else acc)
            if s >= 2 and s < 15 and side:
                k = -(-len(side) // nslots)
                for _ in range(k):
                    side.pop(0)()
            if s >= 2 and s < 15:
                nslots -= 1
            if s >= 15 and not last and post:
                post.pop(0)()
    assert not side
    if not last:
        assert not post


for i in range(NIT):
    steady(i, False)
    if i in (0, 2, 4):
        stamp(f"S{i}")
a(f"s_cmp_lg_u32 s{sT1}, 0")
a("s_cbranch_scc1 L_extra")
a("s_nop 7")
save_vm = list(vm.ops)
for f in store_block(FS, FS + 4, vOs, (NIT - 1) * 2 * BLK_O):
    f()
a("s_branch L_fin")
a("L_extra:")
vm.ops = save_vm
steady(NIT, True)
a("s_nop 7")
for f in store_block(FS, FS + 4, vOs, NIT * 2 * BLK_O):
    f()
a("L_fin:")
if opt["diag"]:
    stamp("issued")
    a("s_waitcnt vmcnt(0)")
    stamp("done")
    a("s_waitcnt lgkmcnt(0)")
    a(f"s_cmp_lg_u32 s2, {opt['diagwg']}")
    a("s_cbranch_scc1 L_end")
    a(f"s_cmp_lg_u32 s{sW}, 0")
    a("s_cbranch_scc1 L_end")
    if opt["diag"] == "none":
        a("s_mov_b32 s88, 5000")
    else:
        a("s_sub_u32 s88, s90, s94")
        a("s_lshl_b32 s88, s88, 2")
        a("s_add_u32 s88, s88, 5000")
        a("s_min_u32 s88, s88, 30000")
    a("L_spin:")
    a("s_memrealtime s[92:93]")
    a("s_waitcnt lgkmcnt(0)")
    a("s_sub_u32 s89, s92, s94")
    a("s_cmp_lt_u32 s89, s88")
    a("s_cbranch_scc1 L_spin")
if st:
    stamp("issued")
    a("s_waitcnt vmcnt(0)")
    stamp("done")
    a("s_load_dwordx2 s[8:9], s[0:1], 40")
    st.finish(8, tmpv=(16, 17, 18), tid=f"v{vTID}", waves=8)
a("L_end:")
footer(a, vgpr=256, accum=256, sgpr=102)
print(a.text())
```
